```python
import torch

def _softmax(x, axis=-1):
    return torch.softmax(x, dim=axis)
def _gelu(x):
    return torch.nn.functional.gelu(x, approximate="tanh")
def _silu(x):
    return torch.nn.functional.silu(x)
def _sigmoid(x):
    return torch.sigmoid(x)
def _layernorm(x, axis=-1, eps=1e-5):
    m = x.mean(dim=axis, keepdim=True)
    v = x.var(dim=axis, keepdim=True, unbiased=False)
    return (x - m) / torch.sqrt(v + eps)
def _scatter_add(tgt, idx, src, axis=0):
    return tgt.clone().index_add_(axis, idx, src)
def _segment_sum(src, seg, n):
    out = torch.zeros((n,) + src.shape[1:], dtype=src.dtype)
    return out.index_add_(0, seg, src)
def _pad(x, pw):
    flat = tuple(v for pair in reversed(pw) for v in pair)
    return torch.nn.functional.pad(x, flat)

kernel_name = 'sequential_preLN__sliding_local_dilated__glu_gated_swiglu__prompt'

def setup_inputs():

    _w = (lambda a: (lambda t: t.to(torch.bfloat16) if t.is_floating_point() else t)(torch.as_tensor(a)))
    def _A_setup():
        B, S, D = 1, 2048, 448
        return {
            "x": _w((lambda *s: torch.randn(*s, dtype=torch.bfloat16) * 0.05)(B, S, D)),
            "wqkv": _w((lambda *s: torch.randn(*s, dtype=torch.bfloat16) * 0.05)(D, 3 * D)),
            "wo": _w((lambda *s: torch.randn(*s, dtype=torch.bfloat16) * 0.05)(D, D)),
        }
    _A_in = _A_setup()

    def _B_setup():
        B, S, D, F = 1, 2048, 448, 1792
        return {
            "x": _w((lambda *s: torch.randn(*s, dtype=torch.bfloat16) * 0.05)(B, S, D)),
            "w1": _w((lambda *s: torch.randn(*s, dtype=torch.bfloat16) * 0.8)(D, F) * (2.0 / D) ** 0.5),
            "w3": _w((lambda *s: torch.randn(*s, dtype=torch.bfloat16) * 0.8)(D, F) * (2.0 / D) ** 0.5),
            "w2": _w((lambda *s: torch.randn(*s, dtype=torch.bfloat16) * 0.8)(F, D) * (2.0 / F) ** 0.5),
        }
    _B_in = _B_setup()

    return {
        "A_x": _A_in["x"],
        "A_wqkv": _A_in["wqkv"],
        "A_wo": _A_in["wo"],
        "B_x": _B_in["x"],
        "B_w1": _B_in["w1"],
        "B_w3": _B_in["w3"],
        "B_w2": _B_in["w2"],
    }

def reference(A_x, A_wqkv, A_wo, B_x, B_w1, B_w3, B_w2):
    def _A_ref(x, wqkv, wo):
        B, S, D = x.shape
        H = 16; Dh = D // H
        W, dil = 8, 2
        qkv = (lambda x, *d: x.permute(*d))((x @ wqkv).reshape(B, S, 3, H, Dh), 2, 0, 3, 1, 4)
        q, k, v = qkv[0], qkv[1], qkv[2]
        scale = Dh ** -0.5
        pos = torch.arange(S)
        off = torch.arange(W) * dil
        idx = pos[:, None] - off[None, :]
        mask = idx >= 0
        idx_c = torch.where(mask, idx, 0).reshape(-1)
        kg = k[:, :, idx_c, :].reshape(B, H, S, W, Dh)
        vg = v[:, :, idx_c, :].reshape(B, H, S, W, Dh)
        logits = torch.einsum("bhsd,bhswd->bhsw", q, kg) * scale
        logits = torch.where(mask[None, None, :, :], logits, -1e9)
        attn = _softmax(logits, axis=-1)
        o = torch.einsum("bhsw,bhswd->bhsd", attn, vg)
        return (lambda x, *d: x.permute(*d))(o, 0, 2, 1, 3).reshape(B, S, D) @ wo

    def _B_ref(x, w1, w3, w2):
        gate = torch.einsum("bsd,df->bsf", x, w1)
        up = torch.einsum("bsd,df->bsf", x, w3)
        h = _silu(gate) * up
        out = torch.einsum("bsf,fd->bsd", h, w2)
        return out

    x = A_x
    h = x + _A_ref(_layernorm(x, axis=-1), A_wqkv, A_wo)
    h2 = h + _B_ref(_layernorm(h, axis=-1), B_w1, B_w3, B_w2)
    return h2
```

```python
import re

REG_RE = re.compile(r'^(-|abs\()?([vas])(\d+)\)?$')
RNG_RE = re.compile(r'^(-)?([vas])\[(\d+):(\d+)\]$')

def parse_regs(tok):
    tok = tok.strip()
    if tok.startswith('-'):
        tok = tok[1:]
    if tok.startswith('abs(') or tok.startswith('|'):
        tok = tok.replace('abs(', '').replace(')', '').replace('|', '')
    m = re.match(r'^([vas])(\d+)$', tok)
    if m:
        return [(m.group(1), int(m.group(2)))]
    m = re.match(r'^([vas])\[(\d+):(\d+)\]$', tok)
    if m:
        return [(m.group(1), i) for i in range(int(m.group(2)), int(m.group(3)) + 1)]
    if tok == 'vcc':
        return [('s', 'vcc')]
    if tok in ('vcc_lo', 'vcc_hi'):
        return [('s', 'vcc')]
    if tok == 'exec':
        return [('s', 'exec')]
    if tok == 'm0':
        return [('s', 'm0')]
    return []

TRANS = ('v_exp_f32', 'v_log_f32', 'v_rcp_f32', 'v_rsq_f32', 'v_sqrt_f32', 'v_sin_f32', 'v_cos_f32',
         'v_rcp_iflag_f32')

class Ins:
    __slots__ = ('text', 'op', 'ops', 'mods', 'defs', 'uses', 'kind', 'passes', 'nstates', 'cdefs', 'srcC', 'comment')
    def __init__(self, text):
        self.text = text
        t = text.split(';')[0].strip()
        parts = t.split(None, 1)
        self.op = parts[0]
        rest = parts[1] if len(parts) > 1 else ''
        toks = []
        depth = 0
        cur = ''
        for ch in rest:
            if ch in '[(':
                depth += 1
            if ch in '])':
                depth -= 1
            if ch == ',' and depth == 0:
                toks.append(cur.strip()); cur = ''
            else:
                cur += ch
        if cur.strip():
            toks.append(cur.strip())
        mods = ''
        if toks:
            lp = toks[-1].split(None, 1)
            toks[-1] = lp[0]
            if len(lp) > 1:
                mods = lp[1]
        self.ops = toks
        self.mods = mods
        self.classify()

    def classify(self):
        op = self.op
        R = [parse_regs(t) for t in self.ops]
        self.defs = []
        self.uses = []
        self.srcC = []
        self.passes = 0
        self.nstates = 1
        base = op.replace('_e32', '').replace('_e64', '').replace('_dpp', '').replace('_sdwa', '')
        if op == 's_nop':
            self.kind = 'nop'
            self.nstates = int(self.ops[0], 0) + 1
        elif op.startswith('v_mfma'):
            self.kind = 'mfma'
            self.passes = 8 if '32x32' in op else 4
            self.defs = R[0]
            self.uses = R[1] + R[2] + R[3]
            self.srcC = R[3]
        elif op.startswith('v_'):
            self.kind = 'valu'
            if base.startswith('v_cmp'):
                self.defs = R[0]
                self.uses = sum(R[1:], [])
            elif base in ('v_readfirstlane_b32', 'v_readlane_b32'):
                self.defs = R[0]
                self.uses = sum(R[1:], [])
            elif base.startswith('v_permlane') and 'swap' in base:
                self.defs = R[0] + R[1]
                self.uses = R[0] + R[1]
            elif base in ('v_add_co_u32', 'v_sub_co_u32', 'v_addc_co_u32', 'v_subrev_co_u32'):
                self.defs = R[0] + R[1]
                self.uses = sum(R[2:], [])
            else:
                self.defs = R[0]
                self.uses = sum(R[1:], [])
                if base in ('v_fmac_f32', 'v_dot2c_f32_bf16', 'v_pk_fmac_f16', 'v_writelane_b32'):
                    self.uses += R[0]
                if base == 'v_cndmask_b32' and len(self.ops) == 3:
                    self.uses += [('s', 'vcc')]
                if 'dpp' in op or 'row_' in self.mods or 'quad_perm' in self.mods:
                    self.uses += R[0]
        elif op.startswith('ds_'):
            self.kind = 'ds'
            if op.startswith('ds_read') or op.startswith('ds_bpermute') or op.startswith('ds_permute') or op.startswith('ds_swizzle'):
                self.defs = R[0]
                self.uses = sum(R[1:], [])
            else:
                self.uses = sum(R, [])
        elif op.startswith('buffer_') or op.startswith('global_'):
            self.kind = 'vmem'
            lds = ' lds' in (' ' + self.mods) or op.startswith('global_load_lds')
            if op in ('buffer_inv', 'buffer_wbl2'):
                pass
            elif 'load' in op and not lds:
                self.defs = R[0]
                self.uses = sum(R[1:], [])
            elif 'atomic' in op and 'sc0' in self.mods:
                if op.startswith('global_'):
                    self.defs = R[0]
                    self.uses = sum(R[1:], [])
                else:
                    self.defs = R[0]
                    self.uses = sum(R, [])
            else:
                self.uses = sum(R, [])
                if lds:
                    self.uses += [('s', 'm0')]
        elif op.startswith('s_'):
            self.kind = 'salu'
            if op.startswith('s_cmp') or op.startswith('s_bitcmp') or op.startswith('s_cbranch') or op in (
                    's_branch', 's_barrier', 's_waitcnt', 's_endpgm', 's_sleep', 's_setprio', 's_setreg_b32'):
                self.uses = sum(R, [])
            else:
                self.defs = R[0] if R else []
                self.uses = sum(R[1:], [])
                if 'saveexec' in op:
                    self.defs = self.defs + [('s', 'exec')]
        else:
            raise ValueError('unknown instruction ' + self.text)

    def is_dpp(self):
        return 'dpp' in self.op or 'row_' in self.mods or 'quad_perm' in self.mods
    def is_trans(self):
        return self.op.replace('_e32', '').replace('_e64', '') in TRANS
    def is_dot(self):
        return self.op.startswith('v_dot')
    def is_wide_store(self):
        return self.kind == 'vmem' and 'store' in self.op and ('x4' in self.op or 'x3' in self.op)


def vregs(rs):
    return set(r for r in rs if r[0] in 'va')
def sregs(rs):
    return set(r for r in rs if r[0] == 's')

def required(p, c):
    need = 0
    pd_v = vregs(p.defs); pd_s = sregs(p.defs)
    cu_v = vregs(c.uses); cu_s = sregs(c.uses); cd_v = vregs(c.defs)
    if p.kind == 'valu':
        if c.kind == 'mfma' and pd_v & cu_v:
            need = max(need, 2)
        if c.kind == 'mfma' and ('s', 'exec') in pd_s:
            need = max(need, 4)
        if pd_s and c.kind == 'valu' and (pd_s & cu_s):
            need = max(need, 4 if c.op.startswith('v_readlane') or c.op.startswith('v_writelane') else 2)
        if pd_s and c.kind == 'vmem' and (pd_s & cu_s):
            need = max(need, 5)
        if pd_s and c.kind == 'salu' and (pd_s & cu_s):
            need = max(need, 1)
        if c.kind == 'valu' and (pd_v & cu_v):
            if c.op.startswith('v_readlane') or c.op.startswith('v_readfirstlane'):
                need = max(need, 1)
            if c.is_dpp():
                need = max(need, 2)
            if c.op.startswith('v_permlane'):
                need = max(need, 2)
            if p.is_trans() and not c.is_trans():
                need = max(need, 1)
            if 'sdwa' in p.op or 'op_sel' in p.mods:
                need = max(need, 1)
        if p.is_trans() and c.kind != 'valu' and (pd_v & cu_v):
            need = max(need, 1)
        if p.is_dot():
            if (pd_v & (cu_v | cd_v)):
                if c.is_dot() and c.op == p.op:
                    ab = vregs(sum([parse_regs(t) for t in c.ops[1:3]], []))
                    if pd_v & ab:
                        need = max(need, 3)
                else:
                    need = max(need, 3)
    if p.kind == 'mfma':
        big = {4: 8, 8: 12}[p.passes]
        if c.kind == 'mfma':
            ab = vregs(sum([parse_regs(t) for t in c.ops[1:3]], []))
            if pd_v & ab:
                need = max(need, big)
            cc = vregs(c.srcC)
            if pd_v & cc:
                if not (cc == pd_v and c.passes == p.passes):
                    need = max(need, {4: 6, 8: 10}[p.passes])
            elif pd_v & cd_v:
                need = max(need, big)
        else:
            if pd_v & (cu_v | cd_v):
                need = max(need, big)
        pc = vregs(p.srcC)
        if c.kind == 'valu' and (pc & cd_v):
            need = max(need, {4: 3, 8: 7}[p.passes])
    if p.is_wide_store():
        data = vregs(parse_regs(p.ops[0])) if p.op.startswith('buffer_') else vregs(parse_regs(p.ops[1]))
        if data & cd_v:
            need = max(need, 2 if c.kind == 'valu' else 1)
    if p.kind == 'salu' and ('s', 'm0') in pd_s and ('s', 'm0') in cu_s and c.kind == 'vmem':
        need = max(need, 1)
    return need


class Asm:
    def __init__(self):
        self.items = []
        self.uid = 0
    def __call__(self, s):
        for line in s.strip('\n').split('\n'):
            line = line.strip()
            if not line or line.startswith(';'):
                if line:
                    self.items.append(('raw', '    ' + line))
                continue
            self.items.append(Ins(line))
    def label(self, l):
        self.items.append(('label', l))
    def newlabel(self, p='L'):
        self.uid += 1
        return '%s_%d' % (p, self.uid)
    def raw(self, s):
        self.items.append(('raw', s))
    def comment(self, s):
        self.items.append(('raw', '    ; ' + s))

    def fix_hazards(self, window=14):
        out = []
        hist = []
        ninserted = 0
        labelpos = {}
        for it in self.items:
            if isinstance(it, tuple):
                out.append(it)
                continue
            need = 0
            dist = 0
            for p in reversed(hist):
                r = required(p, it)
                if r > dist:
                    need = max(need, r - dist)
                dist += p.nstates
                if dist >= window:
                    break
            while need > 0:
                n = min(need, 16)
                nop = Ins('s_nop %d' % (n - 1))
                out.append(nop); hist.append(nop); ninserted += 1
                need -= n
            out.append(it)
            hist.append(it)
            if len(hist) > 40:
                hist = hist[-40:]
        self.items = out
        return ninserted


    def auto_waits(self):
        out = []
        vm = []
        lg = []
        labels_after = {}
        pos = {it[1]: i for i, it in enumerate(self.items) if isinstance(it, tuple) and it[0] == 'label'}
        opt_until = -1
        nins = 0
        def need(q, regs):
            k = -1
            for i, e in enumerate(q):
                if e[0] & regs:
                    k = i
            return k
        def count_after(q, k):
            return sum(1 for e in q[k+1:] if not e[1])
        state = {'region': 0}
        def pop_for(q, n):
            keep = []
            for i, e in enumerate(q):
                if count_after(q, i) >= n and (state['region'] == 0 or e[2] == state['region']):
                    continue
                keep.append(e)
            return keep
        for idx, it in enumerate(self.items):
            if isinstance(it, tuple):
                if it[0] == 'label' and it[1] in getattr(self, 'loop_labels', set()):
                    assert not any(e[0] for e in vm) and not any(e[0] for e in lg), 'pending loads at loop label ' + it[1]
                out.append(it)
                continue
            optional = idx < opt_until
            if not optional:
                state['region'] = 0
            if it.op == 's_waitcnt':
                m = re.search(r'vmcnt\((\d+)\)', it.text)
                if m:
                    vm = pop_for(vm, int(m.group(1)))
                m = re.search(r'lgkmcnt\((\d+)\)', it.text)
                if m:
                    lg = pop_for(lg, int(m.group(1)))
                out.append(it)
                continue
            touched = set(it.uses) | set(it.defs)
            touched = set(r for r in touched if r[0] in 'va')
            w = []
            k = need(vm, touched)
            if k >= 0:
                n = min(63, count_after(vm, k))
                w.append('vmcnt(%d)' % n)
                vm = pop_for(vm, n)
            k = need(lg, touched)
            if k >= 0:
                n = min(15, count_after(lg, k))
                w.append('lgkmcnt(%d)' % n)
                lg = pop_for(lg, n)
            if w:
                out.append(Ins('s_waitcnt ' + ' '.join(w)))
                nins += 1
            out.append(it)
            if it.kind == 'vmem' and it.op not in ('buffer_inv', 'buffer_wbl2'):
                vm.append([set(r for r in it.defs if r[0] in 'va'), optional, state['region']])
            elif it.kind == 'ds':
                lg.append([set(r for r in it.defs if r[0] in 'va'), optional, state['region']])
            elif it.op.startswith('s_cbranch') or it.op == 's_branch':
                tgt = it.ops[0]
                if tgt in pos and pos[tgt] > idx and tgt not in getattr(self, 'exit_labels', set()):
                    if idx >= opt_until:
                        self.uid += 1
                        state['region'] = self.uid
                    opt_until = max(opt_until, pos[tgt])
        self.items = out
        return nins

    def check_backedges(self):
        flat = self.items
        pos = {it[1]: i for i, it in enumerate(flat) if isinstance(it, tuple) and it[0] == 'label'}
        probs = []
        for i, it in enumerate(flat):
            if isinstance(it, Ins) and (it.op.startswith('s_cbranch') or it.op == 's_branch'):
                tgt = it.ops[0]
                if tgt in pos:
                    j = pos[tgt]
                    tail = [x for x in flat[max(0, i - 30):i + 1] if isinstance(x, Ins)]
                    head = [x for x in flat[j:j + 30] if isinstance(x, Ins)]
                    d_head = 0
                    for c in head:
                        dist = d_head
                        for p in reversed(tail):
                            r = required(p, c)
                            if r > dist:
                                probs.append((p.text, c.text, r, dist))
                            dist += p.nstates
                            if dist > 14:
                                break
                        d_head += c.nstates
                        if d_head > 14:
                            break
        return probs

    def text(self):
        L = []
        for it in self.items:
            if isinstance(it, tuple):
                L.append(it[1] + ':' if it[0] == 'label' else it[1])
            else:
                L.append('    ' + it.text)
        return '\n'.join(L) + '\n'
```

```python
WOP  = 0x0
W13P = 0x70000
W2P  = 0x380000
CSP  = 0x508000
OP   = 0x520000
HP   = 0x720000
HMP  = 0x8E0000
FLG  = 0x1000000
WS_USED = 0x1010000
S, D, F = 2048, 448, 1792
X_BYTES = S*D*2
WQKV_BYTES = D*3*D*2
WO_BYTES = D*D*2
W1_BYTES = D*F*2
W2_BYTES = F*D*2
```

```python
import sys
sys.path.insert(0, 'gen')
from asmlib import *
from layout import *

NAME = 'sequential_preLN__sliding_local_dilated__glu_gated_swiglu__prompt'
SC = ''
SCL = ''

class RA:
    def __init__(self, start=0, kind='v', limit=256):
        self.n = start; self.kind = kind; self.limit = limit; self.hi = start
    def alloc(self, cnt=1, align=1):
        self.n = (self.n + align - 1) // align * align
        r = self.n
        self.n += cnt
        self.hi = max(self.hi, self.n)
        assert self.n <= self.limit, 'out of registers'
        return r
    def mark(self):
        return self.n
    def release(self, m):
        self.n = m

def vr(r, n=1, k='v'):
    return f'{k}{r}' if n == 1 else f'{k}[{r}:{r+n-1}]'

S_X, S_WQKV, S_WO, S_BX, S_W1, S_W3, S_W2, S_OUT, S_DBG, S_WS = 4, 6, 8, 10, 12, 14, 16, 18, 20, 22
R_X, R_WQ, R_WS, R_PA, R_PB, R_OUT = 24, 28, 32, 36, 40, 44
S_WAVE, S_T0, S_T1, S_T2, S_T3 = 48, 49, 50, 51, 52
S_TB, S_H, S_XL, S_WL, S_WG, S_U, S_A, S_B, S_C = 53, 54, 55, 56, 57, 58, 59, 60, 61
S_M0, S_M1, S_M2 = 62, 64, 66
S_CONST = 68

def srd(a, r, sptr, nbytes):
    a(f's_mov_b32 s{r}, s{sptr}')
    a(f's_and_b32 s{r+1}, s{sptr+1}, 0xffff')
    a(f's_mov_b32 s{r+2}, {nbytes}')
    a(f's_mov_b32 s{r+3}, 0x20000')

def prologue(a, nwg, end_label):
    a(f's_cmp_ge_u32 s2, {nwg}')
    a(f's_cbranch_scc1 {end_label}')
    a('s_load_dwordx16 s[4:19], s[0:1], 0')
    a('s_load_dwordx4 s[20:23], s[0:1], 64')
    a('v_lshrrev_b32 v1, 6, v0')
    a('v_and_b32 v0, 63, v0')
    a(f'v_readfirstlane_b32 s{S_WAVE}, v1')
    a('s_waitcnt lgkmcnt(0)')

def xlane_reduce(a, x, t, op):
    a(f'v_mov_b32 v{t}, v{x}')
    a(f'v_permlane16_swap_b32 v{x}, v{t}')
    a(f'{op} v{x}, v{x}, v{t}')
    a(f'v_mov_b32 v{t}, v{x}')
    a(f'v_permlane32_swap_b32 v{x}, v{t}')
    a(f'{op} v{x}, v{x}, v{t}')

P1_XB = 18432
P1_SLOT = 18432 + 12 * 1056
P0_LDS = 4 * P1_SLOT
SCR_LDS = 5 * P1_SLOT
K1_LDS = SCR_LDS + 2048

def p0_issue(a, ra):
    v_t = ra.alloc(); v_o = ra.alloc()
    L_b = a.newlabel('p0_b'); L_done = a.newlabel('p0_iss_done'); L_wo = a.newlabel('p0_wo')
    a(f's_cmp_ge_u32 s2, 252')
    a(f's_cbranch_scc1 {L_done}')
    a(f's_cmp_ge_u32 s2, 112')
    a(f's_cbranch_scc1 {L_b}')
    a(f's_lshr_b32 s{S_A}, s2, 2')
    a(f's_and_b32 s{S_B}, s2, 3')
    a(f's_lshr_b32 s{S_T0}, s{S_WAVE}, 1')
    a(f's_cmp_eq_u32 s{S_T0}, 0')
    a(f's_cselect_b32 s{R_PA}, s{S_W1}, s{S_W3}')
    a(f's_cselect_b32 s{R_PA+1}, s{S_W1+1}, s{S_W3+1}')
    a(f's_and_b32 s{R_PA+1}, s{R_PA+1}, 0xffff')
    a(f's_mov_b32 s{R_PA+2}, {W1_BYTES}')
    a(f's_mov_b32 s{R_PA+3}, 0x20000')
    a(f'v_lshrrev_b32 v{v_t}, 3, v0')
    a(f'v_mul_u32_u24 v{v_o}, 3584, v{v_t}')
    a(f'v_and_b32 v{v_t}, 7, v0')
    a(f'v_lshl_add_u32 v{v_o}, v{v_t}, 4, v{v_o}')
    a(f's_mul_i32 s{S_T1}, s{S_B}, {112*3584}')
    a(f's_lshl_b32 s{S_T2}, s{S_A}, 7')
    a(f's_add_u32 s{S_T1}, s{S_T1}, s{S_T2}')
    a(f's_and_b32 s{S_T2}, s{S_WAVE}, 1')
    a(f's_mul_i32 s{S_T3}, s{S_T2}, {8*3584}')
    a(f's_add_u32 s{S_T1}, s{S_T1}, s{S_T3}')
    a(f's_mul_i32 s{S_T0}, s{S_T0}, 14336')
    a(f's_lshl_b32 s{S_T2}, s{S_T2}, 10')
    a(f's_add_u32 s{S_T0}, s{S_T0}, s{S_T2}')
    for m in range(7):
        a(f's_add_u32 m0, s{S_T0}, {P0_LDS + m*2048}')
        if m:
            a(f's_add_u32 s{S_T1}, s{S_T1}, {16*3584}')
        a(f'buffer_load_dwordx4 v{v_o}, s[{R_PA}:{R_PA+3}], s{S_T1} offen lds')
    a(f's_branch {L_done}')
    a.label(L_b)
    a(f's_cmp_ge_u32 s2, 224')
    a(f's_mov_b32 s{S_T0}, 112')
    a(f's_cmov_b32 s{S_T0}, 224')
    a(f's_cselect_b32 s{R_PA}, s{S_WO}, s{S_W2}')
    a(f's_cselect_b32 s{R_PA+1}, s{S_WO+1}, s{S_W2+1}')
    a(f's_mov_b32 s{R_PA+2}, {W2_BYTES}')
    a(f's_cmov_b32 s{R_PA+2}, {WO_BYTES}')
    a(f's_and_b32 s{R_PA+1}, s{R_PA+1}, 0xffff')
    a(f's_mov_b32 s{R_PA+3}, 0x20000')
    a(f's_sub_u32 s{S_T0}, s2, s{S_T0}')
    a(f's_mul_i32 s{S_B}, s{S_T0}, 9363')
    a(f's_lshr_b32 s{S_B}, s{S_B}, 16')
    a(f's_mul_i32 s{S_T1}, s{S_B}, 7')
    a(f's_sub_u32 s{S_A}, s{S_T0}, s{S_T1}')
    a(f'v_lshrrev_b32 v{v_t}, 3, v0')
    a(f'v_mul_u32_u24 v{v_o}, 896, v{v_t}')
    a(f'v_and_b32 v{v_t}, 7, v0')
    a(f'v_lshl_add_u32 v{v_o}, v{v_t}, 4, v{v_o}')
    a(f's_mul_i32 s{S_T1}, s{S_B}, {112*896}')
    a(f's_lshl_b32 s{S_T2}, s{S_A}, 7')
    a(f's_add_u32 s{S_T1}, s{S_T1}, s{S_T2}')
    a(f's_mul_i32 s{S_T3}, s{S_WAVE}, {8*896}')
    a(f's_add_u32 s{S_T1}, s{S_T1}, s{S_T3}')
    a(f's_lshl_b32 s{S_T0}, s{S_WAVE}, 10')
    L_s = a.newlabel('p0_skip3')
    for m in range(4):
        if m == 3:
            a(f's_cmp_ge_u32 s{S_WAVE}, 2')
            a(f's_cbranch_scc1 {L_s}')
        a(f's_add_u32 m0, s{S_T0}, {P0_LDS + m*4096}')
        if m:
            a(f's_add_u32 s{S_T1}, s{S_T1}, {32*896}')
        a(f'buffer_load_dwordx4 v{v_o}, s[{R_PA}:{R_PA+3}], s{S_T1} offen lds')
    a.label(L_s)
    a.label(L_done)

def p0_process(a, ra, v_ones):
    mk = ra.mark()
    v_t = ra.alloc(); v_u = ra.alloc(); v_ad = ra.alloc(); v_go = ra.alloc(); v_cs = ra.alloc()
    fr = ra.alloc(28, 4)
    L_b = a.newlabel('p0p_b'); L_wo = a.newlabel('p0p_wo'); L_done = a.newlabel('p0p_done')
    a(f's_cmp_ge_u32 s2, 252')
    a(f's_cbranch_scc1 {L_done}')
    a(f'v_lshlrev_b32 v{v_go}, 4, v0')
    a(f's_cmp_ge_u32 s2, 112')
    a(f's_cbranch_scc1 {L_b}')
    a(f'v_bfe_u32 v{v_t}, v0, 4, 1')
    a(f'v_mul_u32_u24 v{v_ad}, 14336, v{v_t}')
    a(f'v_lshrrev_b32 v{v_t}, 5, v0')
    a(f'v_lshl_add_u32 v{v_ad}, v{v_t}, 10, v{v_ad}')
    a(f'v_bfe_u32 v{v_t}, v0, 2, 2')
    a(f'v_lshl_add_u32 v{v_ad}, v{v_t}, 7, v{v_ad}')
    a(f'v_and_b32 v{v_t}, 3, v0')
    a(f'v_lshl_add_u32 v{v_ad}, v{v_t}, 3, v{v_ad}')
    a(f's_lshl_b32 s{S_T0}, s{S_WAVE}, 5')
    a(f's_add_u32 s{S_T0}, s{S_T0}, {P0_LDS}')
    a(f'v_add_u32 v{v_ad}, s{S_T0}, v{v_ad}')
    for i in range(7):
        a(f'ds_read_b64_tr_b16 v[{fr+4*i}:{fr+4*i+1}], v{v_ad} offset:{i*2048}')
        a(f'ds_read_b64_tr_b16 v[{fr+4*i+2}:{fr+4*i+3}], v{v_ad} offset:{i*2048+512}')
    a(f's_lshl_b32 s{S_T0}, s{S_A}, 2')
    a(f's_add_u32 s{S_T0}, s{S_T0}, s{S_WAVE}')
    a(f's_mul_i32 s{S_T1}, s{S_T0}, 28')
    a(f's_mul_i32 s{S_T2}, s{S_B}, 7')
    a(f's_add_u32 s{S_T1}, s{S_T1}, s{S_T2}')
    a(f's_lshl_b32 s{S_T1}, s{S_T1}, 10')
    a(f's_add_u32 s{S_T1}, s{S_T1}, {W13P}')
    a(f'v_mov_b32 v{v_cs}, 0')
    a('s_waitcnt lgkmcnt(0)')
    for i in range(7):
        if i:
            a(f's_add_u32 s{S_T1}, s{S_T1}, 1024')
        a(f'buffer_store_dwordx4 v[{fr+4*i}:{fr+4*i+3}], v{v_go}, s[{R_WS}:{R_WS+3}], s{S_T1} offen{SC}')
        for j in range(4):
            a(f'v_dot2_f32_bf16 v{v_cs}, v{fr+4*i+j}, v{v_ones}, v{v_cs}')
    a(f'v_mov_b32 v{v_t}, v{v_cs}')
    a(f'v_permlane32_swap_b32 v{v_cs}, v{v_t}')
    a(f'v_add_f32 v{v_cs}, v{v_cs}, v{v_t}')
    a(f's_mul_i32 s{S_T1}, s{S_B}, 112')
    a(f's_add_u32 s{S_T1}, s{S_T1}, s{S_T0}')
    a(f's_lshl_b32 s{S_T1}, s{S_T1}, 7')
    a(f's_add_u32 s{S_T1}, s{S_T1}, {CSP}')
    a(f'v_and_b32 v{v_t}, 31, v0')
    a(f'v_lshlrev_b32 v{v_t}, 2, v{v_t}')
    a(f'buffer_store_dword v{v_cs}, v{v_t}, s[{R_WS}:{R_WS+3}], s{S_T1} offen{SC}')
    a(f's_branch {L_done}')
    a.label(L_b)
    a(f's_cmp_ge_u32 s2, 224')
    a(f's_cbranch_scc1 {L_wo}')
    a(f'v_bfe_u32 v{v_t}, v0, 4, 1')
    a(f'v_lshlrev_b32 v{v_ad}, 5, v{v_t}')
    a(f'v_lshrrev_b32 v{v_t}, 5, v0')
    a(f'v_lshl_add_u32 v{v_ad}, v{v_t}, 9, v{v_ad}')
    a(f'v_bfe_u32 v{v_t}, v0, 2, 2')
    a(f'v_lshl_add_u32 v{v_ad}, v{v_t}, 7, v{v_ad}')
    a(f'v_and_b32 v{v_t}, 3, v0')
    a(f'v_lshl_add_u32 v{v_ad}, v{v_t}, 3, v{v_ad}')
    a(f's_and_b32 s{S_T0}, s{S_WAVE}, 1')
    a(f's_lshr_b32 s{S_T1}, s{S_WAVE}, 1')
    a(f's_lshl_b32 s{S_T2}, s{S_T0}, 6')
    a(f's_lshl_b32 s{S_T3}, s{S_T1}, 11')
    a(f's_add_u32 s{S_T2}, s{S_T2}, s{S_T3}')
    a(f's_add_u32 s{S_T2}, s{S_T2}, {P0_LDS}')
    a(f'v_add_u32 v{v_ad}, s{S_T2}, v{v_ad}')
    for m in range(4):
        a(f'ds_read_b64_tr_b16 v[{fr+4*m}:{fr+4*m+1}], v{v_ad} offset:{m*4096}')
        a(f'ds_read_b64_tr_b16 v[{fr+4*m+2}:{fr+4*m+3}], v{v_ad} offset:{m*4096+1024}')
    a(f's_lshl_b32 s{S_T2}, s{S_A}, 1')
    a(f's_add_u32 s{S_T2}, s{S_T2}, s{S_T0}')
    a(f's_mul_i32 s{S_T2}, s{S_T2}, 112')
    a(f's_mul_i32 s{S_T3}, s{S_B}, 7')
    a(f's_add_u32 s{S_T2}, s{S_T2}, s{S_T3}')
    a(f's_add_u32 s{S_T2}, s{S_T2}, s{S_T1}')
    a(f's_lshl_b32 s{S_T2}, s{S_T2}, 10')
    a(f's_add_u32 s{S_T2}, s{S_T2}, {W2P}')
    a('s_waitcnt lgkmcnt(0)')
    for m in range(4):
        if m == 3:
            a(f's_cmp_ge_u32 s{S_WAVE}, 2')
            a(f's_cbranch_scc1 {L_done}')
        if m:
            a(f's_add_u32 s{S_T2}, s{S_T2}, 2048')
        a(f'buffer_store_dwordx4 v[{fr+4*m}:{fr+4*m+3}], v{v_go}, s[{R_WS}:{R_WS+3}], s{S_T2} offen{SC}')
    a(f's_branch {L_done}')
    a.label(L_wo)
    a(f'v_lshrrev_b32 v{v_t}, 4, v0')
    a(f'v_lshlrev_b32 v{v_ad}, 9, v{v_t}')
    a(f'v_bfe_u32 v{v_t}, v0, 2, 2')
    a(f'v_lshl_add_u32 v{v_ad}, v{v_t}, 7, v{v_ad}')
    a(f'v_and_b32 v{v_t}, 3, v0')
    a(f'v_lshl_add_u32 v{v_ad}, v{v_t}, 3, v{v_ad}')
    a(f's_mul_i32 s{S_T0}, s{S_WAVE}, {28*128}')
    a(f's_add_u32 s{S_T0}, s{S_T0}, {P0_LDS}')
    a(f'v_add_u32 v{v_ad}, s{S_T0}, v{v_ad}')
    for n in range(4):
        a(f'ds_read_b64_tr_b16 v[{fr+4*n}:{fr+4*n+1}], v{v_ad} offset:{n*32}')
        a(f'ds_read_b64_tr_b16 v[{fr+4*n+2}:{fr+4*n+3}], v{v_ad} offset:{n*32+2048}')
    a(f'v_cmp_gt_u32 vcc, 48, v0')
    a(f's_lshl_b32 s{S_T2}, s{S_A}, 6')
    a(f's_lshl_b32 s{S_T3}, s{S_B}, 2')
    a(f's_add_u32 s{S_T2}, s{S_T2}, s{S_T3}')
    a(f's_add_u32 s{S_T2}, s{S_T2}, s{S_WAVE}')
    a(f's_lshl_b32 s{S_T2}, s{S_T2}, 10')
    if WOP:
        a(f's_add_u32 s{S_T2}, s{S_T2}, {WOP}')
    a('s_waitcnt lgkmcnt(0)')
    for n in range(4):
        a(f'v_cndmask_b32 v{fr+4*n+2}, 0, v{fr+4*n+2}, vcc')
        a(f'v_cndmask_b32 v{fr+4*n+3}, 0, v{fr+4*n+3}, vcc')
        if n:
            a(f's_add_u32 s{S_T2}, s{S_T2}, {16*1024}')
        a(f'buffer_store_dwordx4 v[{fr+4*n}:{fr+4*n+3}], v{v_go}, s[{R_WS}:{R_WS+3}], s{S_T2} offen{SC}')
    a.label(L_done)
    ra.release(mk)

def p1_setup(a, ra):
    R = {}
    for nm in ['vX0', 'vX1', 'vW', 'vB0', 'vB1', 'vA', 'vBc0', 'vBc1', 'vAc', 'ones']:
        R[nm] = ra.alloc()
    mk = ra.mark()
    t = ra.alloc(); u = ra.alloc(); w = ra.alloc()
    a(f's_and_b32 s{S_T0}, s2, 7')
    a(f's_lshr_b32 s{S_T1}, s2, 3')
    a(f's_lshr_b32 s{S_TB}, s{S_T0}, 1')
    a(f's_lshl_b32 s{S_TB}, s{S_TB}, 2')
    a(f's_lshr_b32 s{S_T2}, s{S_T1}, 3')
    a(f's_add_u32 s{S_TB}, s{S_TB}, s{S_T2}')
    a(f's_and_b32 s{S_H}, s{S_T0}, 1')
    a(f's_lshl_b32 s{S_H}, s{S_H}, 3')
    a(f's_and_b32 s{S_T2}, s{S_T1}, 7')
    a(f's_add_u32 s{S_H}, s{S_H}, s{S_T2}')
    a(f's_lshl_b32 s{S_XL}, s{S_WAVE}, 10')
    a(f's_mul_i32 s{S_WL}, s{S_WAVE}, 1056')
    a(f's_add_u32 s{S_WL}, s{S_WL}, {P1_XB}')
    a(f's_mul_i32 s{S_WG}, s{S_WAVE}, {16*2688}')
    a(f'v_mov_b32 v{R["ones"]}, 0x3f803f80')
    a(f's_and_b32 s{S_T0}, s{S_WAVE}, 1')
    a(f's_lshl_b32 s{S_T0}, s{S_T0}, 3')
    a(f'v_lshrrev_b32 v{t}, 3, v0')
    a(f'v_add_u32 v{u}, s{S_T0}, v{t}')
    a(f'v_lshrrev_b32 v{u}, 1, v{u}')
    a(f'v_add_u32 v{u}, 6, v{u}')
    a(f'v_and_b32 v{w}, 7, v0')
    a(f'v_xor_b32 v{u}, v{u}, v{w}')
    a(f'v_and_b32 v{u}, 7, v{u}')
    a(f'v_lshlrev_b32 v{u}, 4, v{u}')
    a(f's_lshl_b32 s{S_T0}, s{S_TB}, 7')
    a(f's_lshl_b32 s{S_T1}, s{S_WAVE}, 3')
    a(f's_add_u32 s{S_T0}, s{S_T0}, s{S_T1}')
    a(f's_sub_u32 s{S_T0}, s{S_T0}, 16')
    a(f'v_add_u32 v{t}, s{S_T0}, v{t}')
    a(f'v_add_u32 v{w}, 32, v{t}')
    a(f'v_max_i32 v{t}, 0, v{t}')
    a(f'v_mul_u32_u24 v{t}, 896, v{t}')
    a(f'v_add_u32 v{R["vX0"]}, v{t}, v{u}')
    a(f'v_mul_u32_u24 v{w}, 896, v{w}')
    a(f'v_add_u32 v{R["vX1"]}, v{w}, v{u}')
    a(f'v_lshrrev_b32 v{t}, 2, v0')
    a(f'v_mul_u32_u24 v{t}, 2688, v{t}')
    a(f'v_and_b32 v{u}, 3, v0')
    a(f'v_lshl_add_u32 v{t}, v{u}, 4, v{t}')
    a(f's_mul_i32 s{S_T0}, s{S_H}, 56')
    a(f'v_add_u32 v{R["vW"]}, s{S_T0}, v{t}')
    a(f'v_bfe_u32 v{t}, v0, 4, 1')
    a(f'v_lshlrev_b32 v{t}, 1, v{t}')
    a(f'v_lshrrev_b32 v{u}, 5, v0')
    a(f'v_or_b32 v{t}, v{t}, v{u}')
    a(f'v_and_b32 v{u}, 15, v0')
    a(f'v_lshrrev_b32 v{w}, 1, v{u}')
    a(f'v_add_u32 v{w}, 6, v{w}')
    a(f'v_and_b32 v{w}, 7, v{w}')
    a(f'v_xor_b32 v{w}, v{w}, v{t}')
    a(f'v_lshlrev_b32 v{w}, 4, v{w}')
    a(f'v_lshl_add_u32 v{w}, v{u}, 7, v{w}')
    a(f's_lshl_b32 s{S_T0}, s{S_WAVE}, 12')
    a(f'v_add_u32 v{R["vB0"]}, s{S_T0}, v{w}')
    a(f'v_xor_b32 v{R["vB1"]}, 64, v{R["vB0"]}')
    a(f'v_lshrrev_b32 v{u}, 1, v{t}')
    a(f'v_mul_u32_u24 v{w}, 1056, v{u}')
    a(f'v_and_b32 v{u}, 1, v{t}')
    a(f'v_lshl_add_u32 v{w}, v{u}, 9, v{w}')
    a(f'v_bfe_u32 v{u}, v0, 2, 2')
    a(f'v_lshl_add_u32 v{w}, v{u}, 6, v{w}')
    a(f'v_and_b32 v{u}, 3, v0')
    a(f'v_lshl_add_u32 v{w}, v{u}, 3, v{w}')
    a(f'v_add_u32 v{R["vA"]}, {P1_XB}, v{w}')
    ra.release(mk)
    return R

def p1_issue_chunk(a, R, c):
    slot = (c % 5) * P1_SLOT
    for m in range(5):
        L = None
        if m == 4:
            L = a.newlabel('p1_skipx')
            a(f's_cmp_ge_u32 s{S_WAVE}, 2')
            a(f's_cbranch_scc1 {L}')
        a(f's_add_u32 m0, s{S_XL}, {slot + m*4096}')
        so = 128*c if m == 0 else (m-1)*32*896 + 128*c
        a(f's_mov_b32 s{S_T0}, {so}')
        a(f'buffer_load_dwordx4 v{R["vX0"] if m == 0 else R["vX1"]}, s[{R_X}:{R_X+3}], s{S_T0} offen lds')
        if L:
            a.label(L)
    for mat in range(3):
        a(f's_add_u32 m0, s{S_WL}, {slot + mat*4*1056}')
        a(f's_add_u32 s{S_T0}, s{S_WG}, {64*c*2688 + 896*mat}')
        a(f'buffer_load_dwordx4 v{R["vW"]}, s[{R_WQ}:{R_WQ+3}], s{S_T0} offen lds')

def p1_main(a, ra, R):
    acc = {}
    for m in 'QKV':
        for tau in range(3):
            for dt in range(2):
                acc[m, tau, dt] = ra.alloc(4, 4)
    sm = [ra.alloc() for _ in range(3)]
    sq = [ra.alloc() for _ in range(3)]
    mk_main = ra.mark()
    A = [[ra.alloc(4, 4) for _ in range(6)] for _ in range(2)]
    B = [[ra.alloc(4, 4) for _ in range(3)] for _ in range(2)]
    for k, r in acc.items():
        for j in range(4):
            a(f'v_mov_b32 v{r+j}, 0')
    for r in sm + sq:
        a(f'v_mov_b32 v{r}, 0')
    t = ra.alloc()
    a(f'v_and_b32 v{t}, 15, v0')
    a(f'v_cmp_eq_u32 s[{S_M0}:{S_M0+1}], 0, v{t}')

    def reads(step):
        c, s2 = divmod(step, 2)
        buf = step & 1
        L = []
        vb = R['vBc1'] if s2 else R['vBc0']
        for tau in range(3):
            L.append(f'ds_read_b128 v[{B[buf][tau]}:{B[buf][tau]+3}], v{vb} offset:{tau*2048}')
        for mat in range(3):
            for dt in range(2):
                r = A[buf][mat*2+dt]
                off = (4*mat + 2*s2)*1056 + dt*32
                L.append(f'ds_read_b64_tr_b16 v[{r}:{r+1}], v{R["vAc"]} offset:{off}')
                L.append(f'ds_read_b64_tr_b16 v[{r+2}:{r+3}], v{R["vAc"]} offset:{off+256}')
        return L
    def set_chunk_addr(c):
        slot = (c % 5) * P1_SLOT
        a(f'v_add_u32 v{R["vBc0"]}, {slot}, v{R["vB0"]}')
        a(f'v_add_u32 v{R["vBc1"]}, {slot}, v{R["vB1"]}')
        a(f'v_add_u32 v{R["vAc"]}, {slot}, v{R["vA"]}')
    waitN = {0: 28, 1: 21, 2: 21, 3: 21, 4: 14, 5: 7, 6: 0}
    a(f's_waitcnt vmcnt({waitN[0]})')
    a('s_barrier')
    set_chunk_addr(0)
    for r in reads(0):
        a(r)
    for step in range(14):
        c, s2 = divmod(step, 2)
        buf = step & 1
        a('s_waitcnt lgkmcnt(0)')
        nxt = []
        if step < 13:
            if s2 == 1:
                a(f's_waitcnt vmcnt({waitN[c+1]})')
                a('s_barrier')
                if c + 5 <= 6:
                    p1_issue_chunk(a, R, c + 5)
                set_chunk_addr(c + 1)
            nxt = reads(step + 1)
        for j in range(4):
            a(f'v_cndmask_b32 v{B[buf][0]+j}, v{B[buf][0]+j}, v{R["ones"]}, s[{S_M0}:{S_M0+1}]')
        mf = []
        for tau in (1, 2, 0):
            b = B[buf][tau]
            for dt in range(2):
                for mi, m in enumerate('QK'):
                    r = acc[m, tau, dt]; w = A[buf][mi*2+dt]
                    mf.append(f'v_mfma_f32_16x16x32_bf16 v[{r}:{r+3}], v[{w}:{w+3}], v[{b}:{b+3}], v[{r}:{r+3}]')
                r = acc['V', tau, dt]; w = A[buf][4+dt]
                mf.append(f'v_mfma_f32_16x16x32_bf16 v[{r}:{r+3}], v[{b}:{b+3}], v[{w}:{w+3}], v[{r}:{r+3}]')
        va = []
        for j in range(4):
            for tau in (1, 2, 0):
                b = B[buf][tau]
                va.append(f'v_dot2_f32_bf16 v{sm[tau]}, v{b+j}, v{R["ones"]}, v{sm[tau]}')
                va.append(f'v_dot2_f32_bf16 v{sq[tau]}, v{b+j}, v{b+j}, v{sq[tau]}')
        fill = []
        ni, vi = 0, 0
        for i, m in enumerate(mf):
            a(m)
            if ni < len(nxt):
                a(nxt[ni]); ni += 1
            for _ in range(2 if i % 3 else 1):
                if vi < len(va):
                    a(va[vi]); vi += 1
        while ni < len(nxt):
            a(nxt[ni]); ni += 1
        while vi < len(va):
            a(va[vi]); vi += 1
    ra.release(mk_main)
    return acc, sm, sq

def p1_epilogue(a, ra, R, acc, sm, sq):
    t = ra.alloc(); t2 = ra.alloc()
    nm = [ra.alloc() for _ in range(3)]; rs = [ra.alloc() for _ in range(3)]
    a(f's_mov_b32 s{S_CONST}, {fhex(1/448)}')
    a(f's_mov_b32 s{S_CONST+1}, {fhex(1e-5)}')
    import struct, math
    cs = struct.unpack('<I', struct.pack('<f', 28 ** -0.5 * math.log2(math.e)))[0]
    a(f's_mov_b32 s{S_CONST+2}, {cs:#x}')
    for tau in range(3):
        xlane_reduce(a, sm[tau], t, 'v_add_f32')
        xlane_reduce(a, sq[tau], t2, 'v_add_f32')
    for tau in range(3):
        a(f'v_mul_f32 v{nm[tau]}, s{S_CONST}, v{sm[tau]}')
        a(f'v_mul_f32 v{t}, s{S_CONST}, v{sq[tau]}')
        a(f'v_fma_f32 v{t}, -v{nm[tau]}, v{nm[tau]}, v{t}')
        a(f'v_max_f32 v{t}, 0, v{t}')
        a(f'v_add_f32 v{t}, s{S_CONST+1}, v{t}')
        a(f'v_rsq_f32 v{rs[tau]}, v{t}')
        a(f'v_sub_f32 v{nm[tau]}, 0, v{nm[tau]}')
    sa = ra.alloc(); sb = ra.alloc()
    a(f's_mul_i32 s{S_T0}, s{S_WAVE}, 384')
    a(f's_add_u32 s{S_T0}, s{S_T0}, {SCR_LDS}')
    a(f'v_and_b32 v{sa}, 15, v0')
    a(f'v_lshlrev_b32 v{sa}, 2, v{sa}')
    a(f'v_add_u32 v{sa}, s{S_T0}, v{sa}')
    a(f'v_lshrrev_b32 v{sb}, 4, v0')
    a(f'v_lshlrev_b32 v{sb}, 4, v{sb}')
    a(f'v_add_u32 v{sb}, s{S_T0}, v{sb}')
    for tau in range(3):
        a(f'ds_write_b32 v{sa}, v{nm[tau]} offset:{tau*128}')
        a(f'ds_write_b32 v{sa}, v{rs[tau]} offset:{tau*128+64}')
    nmV = [ra.alloc(4, 4) for _ in range(3)]; rsV = [ra.alloc(4, 4) for _ in range(3)]
    a('s_waitcnt lgkmcnt(0)')
    for tau in range(3):
        a(f'ds_read_b128 v[{nmV[tau]}:{nmV[tau]+3}], v{sb} offset:{tau*128}')
        a(f'ds_read_b128 v[{rsV[tau]}:{rsV[tau]+3}], v{sb} offset:{tau*128+64}')
    csQ = [ra.alloc(4, 4) for _ in range(2)]; csK = [ra.alloc(4, 4) for _ in range(2)]; csV = [ra.alloc() for _ in range(2)]
    for dt in range(2):
        for r in range(4):
            a(f'v_mov_b32_dpp v{csQ[dt]+r}, v{acc["Q",0,dt]+r} row_newbcast:0 row_mask:0xf bank_mask:0xf')
            a(f'v_mov_b32_dpp v{csK[dt]+r}, v{acc["K",0,dt]+r} row_newbcast:0 row_mask:0xf bank_mask:0xf')
        a(f'v_mov_b32 v{csV[dt]}, v{acc["V",0,dt]}')
        a(f'v_mov_b32 v{t}, v{csV[dt]}')
        a(f'v_permlane16_swap_b32 v{csV[dt]}, v{t}')
        a(f'v_mov_b32 v{t}, v{csV[dt]}')
        a(f'v_permlane32_swap_b32 v{csV[dt]}, v{t}')
    rq = [ra.alloc() for _ in range(3)]; rqp = [ra.alloc() for _ in range(3)]
    a(f'v_cmp_gt_u32 s[{S_M1}:{S_M1+1}], 48, v0')
    for tau in (1, 2):
        a(f'v_mul_f32 v{rq[tau]}, s{S_CONST+2}, v{rs[tau]}')
        a(f'v_cndmask_b32 v{rqp[tau]}, 0, v{rq[tau]}, s[{S_M1}:{S_M1+1}]')
    Qf = {tau: ra.alloc(4, 4) for tau in (1, 2)}
    Kf = {tau: ra.alloc(4, 4) for tau in range(3)}
    Vf = [ra.alloc(6, 2) for _ in range(2)]
    tm = ra.alloc(4, 4)
    def norm_pack(src, cs, nmr, mul, dst):
        for r in range(4):
            a(f'v_fma_f32 v{tm+r}, v{nmr}, v{cs+r}, v{src+r}')
        for r in range(4):
            a(f'v_mul_f32 v{tm+r}, v{tm+r}, v{mul}')
        a(f'v_cvt_pk_bf16_f32 v{dst}, v{tm}, v{tm+1}')
        a(f'v_cvt_pk_bf16_f32 v{dst+1}, v{tm+2}, v{tm+3}')
    for tau in (1, 2):
        for dt in range(2):
            norm_pack(acc['Q', tau, dt], csQ[dt], nm[tau], rq[tau] if dt == 0 else rqp[tau], Qf[tau] + 2*dt)
    for tau in range(3):
        for dt in range(2):
            norm_pack(acc['K', tau, dt], csK[dt], nm[tau], rs[tau], Kf[tau] + 2*dt)
    a('s_waitcnt lgkmcnt(0)')
    for tau in range(3):
        for dt in range(2):
            src = acc['V', tau, dt]
            for r in range(4):
                a(f'v_fma_f32 v{tm+r}, v{nmV[tau]+r}, v{csV[dt]}, v{src+r}')
            for r in range(4):
                a(f'v_mul_f32 v{tm+r}, v{tm+r}, v{rsV[tau]+r}')
            a(f'v_cvt_pk_bf16_f32 v{Vf[dt]+2*tau}, v{tm}, v{tm+1}')
            a(f'v_cvt_pk_bf16_f32 v{Vf[dt]+2*tau+1}, v{tm+2}, v{tm+3}')
    Sx = {(c, k): ra.alloc(4, 4) for c in (1, 2) for k in range(2)}
    for c in (1, 2):
        for k in range(2):
            r = Sx[c, k]; kf = Kf[c-1+k]; qf = Qf[c]
            a(f'v_mfma_f32_16x16x32_bf16 v[{r}:{r+3}], v[{kf}:{kf+3}], v[{qf}:{qf+3}], 0')
    bP = ra.alloc(4, 4); bC = ra.alloc(4, 4); bP0 = ra.alloc(4, 4)
    neg = ra.alloc()
    a(f'v_mov_b32 v{neg}, 0xf149f2ca')
    a(f'v_and_b32 v{t}, 15, v0')
    a(f'v_lshrrev_b32 v{t2}, 4, v0')
    a(f'v_lshlrev_b32 v{t2}, 2, v{t2}')
    a(f'v_sub_u32 v{t}, v{t}, v{t2}')
    a(f's_or_b32 s{S_T0}, s{S_TB}, s{S_WAVE}')
    a(f's_cmp_eq_u32 s{S_T0}, 0')
    a(f's_cselect_b64 s[{S_M2}:{S_M2+1}], -1, 0')
    for r in range(4):
        a(f'v_subrev_u32 v{t2}, {r}, v{t}')
        a(f'v_and_b32 v{tm}, 1, v{t2}')
        a(f'v_cmp_eq_u32 vcc, 0, v{tm}')
        a(f'v_cndmask_b32 v{tm+1}, v{neg}, 0, vcc')
        a(f'v_cmp_gt_i32 vcc, 0, v{t2}')
        a(f'v_cndmask_b32 v{bP+r}, v{neg}, v{tm+1}, vcc')
        a(f'v_cndmask_b32 v{bC+r}, v{tm+1}, v{neg}, vcc')
        a(f'v_cndmask_b32 v{bP0+r}, v{bP+r}, v{neg}, s[{S_M2}:{S_M2+1}]')
    mx = {c: ra.alloc() for c in (1, 2)}; ls = {c: ra.alloc() for c in (1, 2)}; lp = {c: ra.alloc() for c in (1, 2)}
    Pf = {c: ra.alloc(4, 4) for c in (1, 2)}
    for c in (1, 2):
        for r in range(4):
            a(f'v_add_f32 v{Sx[c,0]+r}, v{Sx[c,0]+r}, v{(bP0 if c == 1 else bP)+r}')
            a(f'v_add_f32 v{Sx[c,1]+r}, v{Sx[c,1]+r}, v{bC+r}')
    for c in (1, 2):
        s0, s1 = Sx[c, 0], Sx[c, 1]
        a(f'v_max3_f32 v{mx[c]}, v{s0}, v{s0+1}, v{s0+2}')
        a(f'v_max3_f32 v{mx[c]}, v{mx[c]}, v{s0+3}, v{s1}')
        a(f'v_max3_f32 v{mx[c]}, v{mx[c]}, v{s1+1}, v{s1+2}')
        a(f'v_max_f32 v{mx[c]}, v{mx[c]}, v{s1+3}')
    for c in (1, 2):
        xlane_reduce(a, mx[c], t if c == 1 else t2, 'v_max_f32')
    for c in (1, 2):
        for k in range(2):
            for r in range(4):
                a(f'v_sub_f32 v{Sx[c,k]+r}, v{Sx[c,k]+r}, v{mx[c]}')
        for k in range(2):
            for r in range(4):
                a(f'v_exp_f32 v{Sx[c,k]+r}, v{Sx[c,k]+r}')
    for c in (1, 2):
        s0, s1 = Sx[c, 0], Sx[c, 1]
        a(f'v_cvt_pk_bf16_f32 v{Pf[c]}, v{s0}, v{s0+1}')
        a(f'v_cvt_pk_bf16_f32 v{Pf[c]+1}, v{s0+2}, v{s0+3}')
        a(f'v_cvt_pk_bf16_f32 v{Pf[c]+2}, v{s1}, v{s1+1}')
        a(f'v_cvt_pk_bf16_f32 v{Pf[c]+3}, v{s1+2}, v{s1+3}')
        a(f'v_add_f32 v{ls[c]}, v{s0}, v{s0+1}')
        for r in (s0+2, s0+3, s1, s1+1, s1+2, s1+3):
            a(f'v_add_f32 v{ls[c]}, v{ls[c]}, v{r}')
    Ox = {(c, dt): ra.alloc(4, 4) for c in (1, 2) for dt in range(2)}
    for c in (1, 2):
        for dt in range(2):
            r = Ox[c, dt]; vf = Vf[dt] + 2*(c-1)
            a(f'v_mfma_f32_16x16x32_bf16 v[{r}:{r+3}], v[{vf}:{vf+3}], v[{Pf[c]}:{Pf[c]+3}], 0')
    for c in (1, 2):
        xlane_reduce(a, ls[c], t if c == 1 else t2, 'v_add_f32')
    for c in (1, 2):
        a(f'v_rcp_f32 v{ls[c]}, v{ls[c]}')
    for c in (1, 2):
        a(f'v_cndmask_b32 v{lp[c]}, 0, v{ls[c]}, s[{S_M1}:{S_M1+1}]')
    go = ra.alloc()
    a(f'v_lshlrev_b32 v{go}, 4, v0')
    a(f's_lshl_b32 s{S_T0}, s{S_TB}, 3')
    a(f's_lshl_b32 s{S_T1}, s{S_WAVE}, 1')
    a(f's_add_u32 s{S_T0}, s{S_T0}, s{S_T1}')
    a(f's_lshl_b32 s{S_T0}, s{S_T0}, 4')
    a(f's_add_u32 s{S_T0}, s{S_T0}, s{S_H}')
    a(f's_lshl_b32 s{S_T0}, s{S_T0}, 10')
    a(f's_add_u32 s{S_T0}, s{S_T0}, {OP}')
    for c in (1, 2):
        of = Pf[c]
        for dt in range(2):
            r = Ox[c, dt]; mul = ls[c] if dt == 0 else lp[c]
            for j in range(4):
                a(f'v_mul_f32 v{r+j}, v{r+j}, v{mul}')
            a(f'v_cvt_pk_bf16_f32 v{of+2*dt}, v{r}, v{r+1}')
            a(f'v_cvt_pk_bf16_f32 v{of+2*dt+1}, v{r+2}, v{r+3}')
        if c == 2:
            a(f's_add_u32 s{S_T0}, s{S_T0}, {16*1024}')
        a(f'buffer_store_dwordx4 v[{of}:{of+3}], v{go}, s[{R_WS}:{R_WS+3}], s{S_T0} offen{SC}')

def k1(a):
    end = a.newlabel('k1_end')
    a.exit_labels = getattr(a, 'exit_labels', set()) | {end}
    prologue(a, 256, end)
    srd(a, R_X, S_X, X_BYTES)
    srd(a, R_WQ, S_WQKV, WQKV_BYTES)
    srd(a, R_WS, S_WS, WS_USED)
    ra = RA(1)
    R = p1_setup(a, ra)
    mk = ra.mark()
    p0_issue(a, ra)
    ra.release(mk)
    for c in range(4):
        p1_issue_chunk(a, R, c)
    a('s_waitcnt vmcnt(28)')
    a('s_barrier')
    p0_process(a, ra, R['ones'])
    a('s_barrier')
    p1_issue_chunk(a, R, 4)
    acc, sm, sq = p1_main(a, ra, R)
    p1_epilogue(a, ra, R, acc, sm, sq)
    a.label(end)
    a('s_endpgm')
    return ra.hi

def k2(a):
    end = a.newlabel('k2_end')
    a.exit_labels = getattr(a, 'exit_labels', set()) | {end}
    prologue(a, 256, end)
    srd(a, R_X, S_X, X_BYTES)
    srd(a, R_WS, S_WS, WS_USED)
    ra = RA(1)
    p2_body(a, ra)
    a.label(end)
    a('s_endpgm')
    return ra.hi

def p2_body(a, ra):
    l16 = ra.alloc(); t = ra.alloc(); u = ra.alloc(); vx = ra.alloc(); vh = ra.alloc()
    A = [[ra.alloc(4, 4) for i in range(4)] for j in range(7)]
    B = [[ra.alloc(4, 4) for i in range(4)] for tau in range(2)]
    acc = [[ra.alloc(4, 4) for j in range(7)] for tau in range(2)]
    X = [ra.alloc(2, 2) for m in range(4)]
    a(f's_and_b32 s{S_T0}, s2, 7')
    a(f's_lshr_b32 s{S_T1}, s2, 3')
    a(f's_lshl_b32 s{S_TB}, s{S_T0}, 3')
    a(f's_lshr_b32 s{S_T2}, s{S_T1}, 2')
    a(f's_add_u32 s{S_TB}, s{S_TB}, s{S_T2}')
    a(f's_and_b32 s{S_H}, s{S_T1}, 3')
    a(f'v_lshlrev_b32 v{l16}, 4, v0')
    a(f's_mul_i32 s{S_T0}, s{S_H}, {7*16}')
    a(f's_lshl_b32 s{S_T1}, s{S_WAVE}, 2')
    a(f's_add_u32 s{S_T0}, s{S_T0}, s{S_T1}')
    a(f's_lshl_b32 s{S_T0}, s{S_T0}, 10')
    if WOP:
        a(f's_add_u32 s{S_T0}, s{S_T0}, {WOP}')
    a(f's_lshl_b32 s{S_T2}, s{S_TB}, 5')
    a(f's_add_u32 s{S_T2}, s{S_T2}, s{S_T1}')
    a(f's_lshl_b32 s{S_T2}, s{S_T2}, 10')
    a(f's_add_u32 s{S_T2}, s{S_T2}, {OP}')
    for tau in range(2):
        if tau:
            a(f's_add_u32 s{S_T2}, s{S_T2}, {16*1024}')
        for i in range(4):
            r = B[tau][i]
            a(f'buffer_load_dwordx4 v[{r}:{r+3}], v{l16}, s[{R_WS}:{R_WS+3}], s{S_T2} offen offset:{i*1024}{SCL}')
    for j in range(7):
        if j:
            a(f's_add_u32 s{S_T0}, s{S_T0}, {16*1024}')
        for i in range(4):
            r = A[j][i]
            a(f'buffer_load_dwordx4 v[{r}:{r+3}], v{l16}, s[{R_WS}:{R_WS+3}], s{S_T0} offen offset:{i*1024}{SCL}')
    a(f's_and_b32 s{S_T0}, s{S_WAVE}, 1')
    a(f's_lshr_b32 s{S_T1}, s{S_WAVE}, 1')
    a(f'v_and_b32 v{t}, 15, v0')
    a(f's_lshl_b32 s{S_T2}, s{S_T0}, 4')
    a(f'v_add_u32 v{t}, s{S_T2}, v{t}')
    a(f'v_mul_u32_u24 v{vx}, 896, v{t}')
    a(f'v_lshrrev_b32 v{u}, 4, v0')
    a(f'v_lshl_add_u32 v{vx}, v{u}, 3, v{vx}')
    a(f's_lshl_b32 s{S_T2}, s{S_T1}, 5')
    a(f'v_add_u32 v{vx}, s{S_T2}, v{vx}')
    a(f's_mul_i32 s{S_T2}, s{S_TB}, {32*896}')
    a(f's_mul_i32 s{S_T3}, s{S_H}, 224')
    a(f's_add_u32 s{S_T2}, s{S_T2}, s{S_T3}')
    for m in range(4):
        a(f'buffer_load_dwordx2 v[{X[m]}:{X[m]+1}], v{vx}, s[{R_X}:{R_X+3}], s{S_T2} offen offset:{m*64}')
    a(f'v_lshrrev_b32 v{vh}, 1, v{u}')
    a(f'v_lshl_add_u32 v{vh}, v{vh}, 5, v{t}')
    a(f'v_lshlrev_b32 v{vh}, 4, v{vh}')
    a(f'v_and_b32 v{u}, 1, v{u}')
    a(f'v_lshl_add_u32 v{vh}, v{u}, 3, v{vh}')
    a(f's_lshl_b32 s{S_T2}, s{S_T1}, 10')
    a(f'v_add_u32 v{vh}, s{S_T2}, v{vh}')
    for j in range(7):
        for i in range(4):
            for tau in range(2):
                r = acc[tau][j]
                c = '0' if i == 0 else f'v[{r}:{r+3}]'
                a(f'v_mfma_f32_16x16x32_bf16 v[{r}:{r+3}], v[{A[j][i]}:{A[j][i]+3}], v[{B[tau][i]}:{B[tau][i]+3}], {c}')
    a(f's_mul_i32 s{S_T0}, s{S_WAVE}, {14*1024}')
    a(f'v_add_u32 v{t}, s{S_T0}, v{l16}')
    for j in range(7):
        for tau in range(2):
            r = acc[tau][j]
            a(f'ds_write_b128 v{t}, v[{r}:{r+3}] offset:{(2*j+tau)*1024}')
    a('s_waitcnt lgkmcnt(0)')
    a('s_barrier')
    a(f's_lshl_b32 s{S_T0}, s{S_WAVE}, 10')
    a(f'v_add_u32 v{t}, s{S_T0}, v{l16}')
    P = [[A[m][wv] for wv in range(4)] for m in range(4)]
    for m in range(4):
        for wv in range(4):
            r = P[m][wv]
            off = wv*14*1024 + m*4096
            a(f'ds_read_b128 v[{r}:{r+3}], v{t} offset:{off}')
    a(f's_mul_i32 s{S_T0}, s{S_TB}, 28')
    a(f's_mul_i32 s{S_T1}, s{S_H}, 7')
    a(f's_add_u32 s{S_T0}, s{S_T0}, s{S_T1}')
    a(f's_lshl_b32 s{S_T0}, s{S_T0}, 10')
    a(f's_add_u32 s{S_T0}, s{S_T0}, {HP}')
    Ls = a.newlabel('p2_skip')
    for m in range(4):
        if m == 3:
            a(f's_cmp_ge_u32 s{S_WAVE}, 2')
            a(f's_cbranch_scc1 {Ls}')
        p0_, p1_, p2_, p3_ = P[m]
        for r in range(4):
            a(f'v_add_f32 v{p0_+r}, v{p0_+r}, v{p1_+r}')
            a(f'v_add_f32 v{p2_+r}, v{p2_+r}, v{p3_+r}')
        xr = p1_
        a(f'v_lshlrev_b32 v{xr}, 16, v{X[m]}')
        a(f'v_and_b32 v{xr+1}, 0xffff0000, v{X[m]}')
        a(f'v_lshlrev_b32 v{xr+2}, 16, v{X[m]+1}')
        a(f'v_and_b32 v{xr+3}, 0xffff0000, v{X[m]+1}')
        for r in range(4):
            a(f'v_add_f32 v{p0_+r}, v{p0_+r}, v{p2_+r}')
        for r in range(4):
            a(f'v_add_f32 v{p0_+r}, v{p0_+r}, v{xr+r}')
        a(f'v_cvt_pk_bf16_f32 v{p2_}, v{p0_}, v{p0_+1}')
        a(f'v_cvt_pk_bf16_f32 v{p2_+1}, v{p0_+2}, v{p0_+3}')
        if m:
            a(f's_add_u32 s{S_T0}, s{S_T0}, 2048')
        a(f'buffer_store_dwordx2 v[{p2_}:{p2_+1}], v{vh}, s[{R_WS}:{R_WS+3}], s{S_T0} offen{SC}')
    a.label(Ls)

P3_STAGE = 28672
P3_CS = 5 * P3_STAGE
K3_LDS = P3_CS + 1024

def k3(a):
    end = a.newlabel('k3_end')
    a.exit_labels = getattr(a, 'exit_labels', set()) | {end}
    prologue(a, 256, end)
    srd(a, R_WS, S_WS, WS_USED)
    ra = RA(1)
    p3_body(a, ra)
    a.label(end)
    a('s_endpgm')
    return ra.hi

def p3_body(a, ra):
    import struct, math
    l16 = ra.alloc(); t = ra.alloc(); ones = ra.alloc(); vcs = ra.alloc(); vAr = ra.alloc()
    B = [ra.alloc(4, 4) for s in range(28)]
    acc = [ra.alloc(16, 4) for _ in range(2)]
    NA = 6
    A = [ra.alloc(4, 4) for _ in range(NA)]
    cs = ra.alloc(16, 4)
    sm = [ra.alloc() for _ in range(2)]; sq = [ra.alloc() for _ in range(2)]
    nm = ra.alloc(); c1 = ra.alloc(); c2 = ra.alloc()
    tg = ra.alloc(8, 4); tu = ra.alloc(8, 4); ee = ra.alloc(8, 4)
    hm = ra.alloc(4, 4)
    cp = ra.alloc(4, 4)
    a(f's_and_b32 s{S_T0}, s2, 7')
    a(f's_lshr_b32 s{S_T1}, s2, 3')
    a(f's_lshr_b32 s{S_TB}, s{S_T0}, 1')
    a(f's_lshl_b32 s{S_TB}, s{S_TB}, 2')
    a(f's_lshr_b32 s{S_T2}, s{S_T1}, 3')
    a(f's_add_u32 s{S_TB}, s{S_TB}, s{S_T2}')
    a(f's_and_b32 s{S_H}, s{S_T0}, 1')
    a(f's_lshl_b32 s{S_H}, s{S_H}, 3')
    a(f's_and_b32 s{S_T2}, s{S_T1}, 7')
    a(f's_add_u32 s{S_H}, s{S_H}, s{S_T2}')
    a(f'v_lshlrev_b32 v{l16}, 4, v0')
    a(f'v_mov_b32 v{ones}, 0x3f803f80')
    a(f's_mul_i32 s{S_A}, s{S_H}, {7*28}')
    a(f's_mul_i32 s{S_B}, s{S_WAVE}, 7')
    a(f's_add_u32 s{S_A}, s{S_A}, s{S_B}')
    a(f's_lshl_b32 s{S_A}, s{S_A}, 10')
    a(f's_add_u32 s{S_A}, s{S_A}, {W13P}')
    a(f's_lshl_b32 s{S_B}, s{S_B}, 10')
    def issue_stage(j):
        slot = (j % 5) * P3_STAGE
        for i in range(7):
            a(f's_add_u32 m0, s{S_B}, {slot + i*1024}')
            a(f's_add_u32 s{S_T0}, s{S_A}, {(j*28 + i)*1024}')
            a(f'buffer_load_dwordx4 v{l16}, s[{R_WS}:{R_WS+3}], s{S_T0} offen lds{SCL}')
    issue_stage(0)
    tid4 = ra.alloc()
    a(f's_lshl_b32 s{S_T0}, s{S_WAVE}, 8')
    a(f'v_lshl_add_u32 v{tid4}, v0, 2, s{S_T0}')
    a(f's_mul_i32 s{S_T0}, s{S_H}, {7*32*4}')
    a(f's_add_u32 s{S_T0}, s{S_T0}, {CSP}')
    for rr in range(4):
        if rr:
            a(f's_add_u32 s{S_T0}, s{S_T0}, 14336')
        a(f'buffer_load_dword v{cp+rr}, v{tid4}, s[{R_WS}:{R_WS+3}], s{S_T0} offen{SCL}')
    a(f's_lshl_b32 s{S_T0}, s{S_TB}, 2')
    a(f's_add_u32 s{S_T0}, s{S_T0}, s{S_WAVE}')
    a(f's_mul_i32 s{S_C}, s{S_T0}, {112*1024}')
    a(f's_mul_i32 s{S_T0}, s{S_T0}, {28*1024}')
    a(f's_add_u32 s{S_T0}, s{S_T0}, {HP}')
    for s in range(28):
        if s and s % 4 == 0:
            a(f's_add_u32 s{S_T0}, s{S_T0}, 4096')
        a(f'buffer_load_dwordx4 v[{B[s]}:{B[s]+3}], v{l16}, s[{R_WS}:{R_WS+3}], s{S_T0} offen offset:{(s%4)*1024}{SCL}')
    for j in range(1, 5):
        issue_stage(j)
    a(f's_mul_i32 s{S_T0}, s{S_H}, {7*1024}')
    a(f's_add_u32 s{S_C}, s{S_C}, s{S_T0}')
    a(f's_add_u32 s{S_C}, s{S_C}, {HMP}')
    a(f'v_add_f32 v{cp}, v{cp}, v{cp+1}')
    a(f'v_add_f32 v{cp+2}, v{cp+2}, v{cp+3}')
    a(f'v_add_f32 v{cp}, v{cp}, v{cp+2}')
    a(f'v_add_u32 v{t}, {P3_CS}, v{tid4}')
    a(f'ds_write_b32 v{t}, v{cp}')
    a(f'v_lshrrev_b32 v{vcs}, 5, v0')
    a(f'v_lshlrev_b32 v{vcs}, 4, v{vcs}')
    a(f'v_add_u32 v{vcs}, {P3_CS}, v{vcs}')
    for r in sm + sq:
        a(f'v_mov_b32 v{r}, 0')
    a(f's_mov_b32 s{S_CONST}, {fhex(1/448)}')
    a(f's_mov_b32 s{S_CONST+1}, {fhex(1e-5)}')
    a(f's_mov_b32 s{S_CONST+2}, {fhex(-math.log2(math.e))}')

    def stats_ops():
        L = []
        for s in range(28):
            for j in range(4):
                k = (s*4 + j) & 1
                L.append(f'v_dot2_f32_bf16 v{sm[k]}, v{B[s]+j}, v{ones}, v{sm[k]}')
                L.append(f'v_dot2_f32_bf16 v{sq[k]}, v{B[s]+j}, v{B[s]+j}, v{sq[k]}')
        return L
    def stats_fin():
        L = []
        L.append(f'v_add_f32 v{sm[0]}, v{sm[0]}, v{sm[1]}')
        L.append(f'v_add_f32 v{sq[0]}, v{sq[0]}, v{sq[1]}')
        for x, tt in ((sm[0], sm[1]), (sq[0], sq[1])):
            L.append(f'v_mov_b32 v{tt}, v{x}')
            L.append(f'v_permlane32_swap_b32 v{x}, v{tt}')
            L.append(f'v_add_f32 v{x}, v{x}, v{tt}')
        L.append(f'v_mul_f32 v{nm}, s{S_CONST}, v{sm[0]}')
        L.append(f'v_mul_f32 v{c2}, s{S_CONST}, v{sq[0]}')
        L.append(f'v_fma_f32 v{c2}, -v{nm}, v{nm}, v{c2}')
        L.append(f'v_max_f32 v{c2}, 0, v{c2}')
        L.append(f'v_add_f32 v{c2}, s{S_CONST+1}, v{c2}')
        L.append(f'v_rsq_f32 v{c1}, v{c2}')
        L.append(f'v_sub_f32 v{nm}, 0, v{nm}')
        L.append(f'v_mul_f32 v{c1}, s{S_CONST+2}, v{c1}')
        return L
    def epi_ops(j):
        ac = acc[j & 1]
        L = []
        for q in range(4):
            L.append(f'ds_read_b128 v[{cs+4*q}:{cs+4*q+3}], v{vcs} offset:{j*128 + q*32}')
        for r in range(8):
            L.append(f'v_fma_f32 v{tg+r}, v{nm}, v{cs+r}, v{ac+r}')
        for r in range(8):
            L.append(f'v_mul_f32 v{ee+r}, v{tg+r}, v{c1}')
        for r in range(8):
            L.append(f'v_exp_f32 v{ee+r}, v{ee+r}')
        for r in range(8):
            L.append(f'v_fma_f32 v{tu+r}, v{nm}, v{cs+8+r}, v{ac+8+r}')
        for r in range(8):
            L.append(f'v_fma_f32 v{ee+r}, v{ee+r}, v{c2}, v{c2}')
        for r in range(8):
            L.append(f'v_rcp_f32 v{ee+r}, v{ee+r}')
        for r in range(8):
            L.append(f'v_mul_f32 v{tg+r}, v{tg+r}, v{tu+r}')
        for r in range(8):
            L.append(f'v_mul_f32 v{tg+r}, v{tg+r}, v{ee+r}')
        for r in range(4):
            L.append(f'v_cvt_pk_bf16_f32 v{hm+r}, v{tg+2*r}, v{tg+2*r+1}')
        L.append(f's_add_u32 s{S_T1}, s{S_C}, {j*1024}')
        L.append(f'buffer_store_dwordx4 v[{hm}:{hm+3}], v{l16}, s[{R_WS}:{R_WS+3}], s{S_T1} offen{SC}')
        return L

    def wait_stage(j):
        if j == 0: n = 4 + 28 + 28
        elif j == 1: n = 21
        elif j == 2: n = 14 + 7
        elif j == 3: n = 7 + 7 + 7
        elif j == 4: n = 14
        elif j == 5: n = 7
        else: n = 0
        a(f's_waitcnt vmcnt({min(n,63)})')
    for j in range(7):
        slot = (j % 5) * P3_STAGE
        wait_stage(j)
        if j == 0:
            a('s_waitcnt lgkmcnt(0)')
        a('s_barrier')
        if j in (1, 2):
            issue_stage(j + 4)
        a(f'v_add_u32 v{vAr}, {slot}, v{l16}')
        fill = []
        if j == 0:
            fill = stats_ops()[:140]
        elif j == 1:
            fill = stats_ops()[140:] + stats_fin() + epi_ops(0)
        else:
            fill = epi_ops(j - 1)
        ac = acc[j & 1]
        PRE = NA - 1
        for s in range(PRE):
            a(f'ds_read_b128 v[{A[s%NA]}:{A[s%NA]+3}], v{vAr} offset:{s*1024}')
        fi = 0
        per = (len(fill) + 27) // 28
        for s in range(28):
            if s + PRE < 28:
                sn = s + PRE
                a(f'ds_read_b128 v[{A[sn%NA]}:{A[sn%NA]+3}], v{vAr} offset:{sn*1024}')
            c = '0' if s == 0 else f'v[{ac}:{ac+15}]'
            a(f'v_mfma_f32_32x32x16_bf16 v[{ac}:{ac+15}], v[{A[s%NA]}:{A[s%NA]+3}], v[{B[s]}:{B[s]+3}], {c}')
            for _ in range(per):
                if fi < len(fill):
                    a(fill[fi]); fi += 1
        while fi < len(fill):
            a(fill[fi]); fi += 1
    for x in epi_ops(6):
        a(x)

def fhex(x):
    import struct
    return '0x%08x' % struct.unpack('<I', struct.pack('<f', x))[0]

P4_PITCH = 1056
K4_LDS = 64 * P4_PITCH

def k4(a):
    end = a.newlabel('k4_end')
    a.exit_labels = getattr(a, 'exit_labels', set()) | {end}
    prologue(a, 224, end)
    srd(a, R_WS, S_WS, WS_USED)
    srd(a, R_OUT, S_OUT, X_BYTES)
    ra = RA(1)
    p4_body(a, ra)
    a.label(end)
    a('s_endpgm')
    return ra.hi

def p4_body(a, ra):
    l16 = ra.alloc(); t = ra.alloc(); u = ra.alloc(); vo = ra.alloc(); vh = ra.alloc(); vr_ = ra.alloc()
    acc = {(tau, n): ra.alloc(16, 4) for tau in range(2) for n in range(2)}
    H = [ra.alloc(4, 4) for _ in range(2)]
    DEP = 10
    Aq = [[ra.alloc(4, 4) for n in range(2)] for _ in range(DEP)]
    Bq = [[ra.alloc(4, 4) for tau in range(2)] for _ in range(DEP)]
    a(f's_and_b32 s{S_T0}, s2, 7')
    a(f's_lshr_b32 s{S_T1}, s2, 3')
    a(f's_mul_i32 s{S_T2}, s{S_T1}, 37')
    a(f's_lshr_b32 s{S_T2}, s{S_T2}, 8')
    a(f's_mul_i32 s{S_T3}, s{S_T2}, 7')
    a(f's_sub_u32 s{S_H}, s{S_T1}, s{S_T3}')
    a(f's_lshl_b32 s{S_TB}, s{S_T0}, 2')
    a(f's_add_u32 s{S_TB}, s{S_TB}, s{S_T2}')
    a(f'v_lshlrev_b32 v{l16}, 4, v0')
    a(f's_mul_i32 s{S_A}, s{S_H}, 224')
    a(f's_mul_i32 s{S_T0}, s{S_WAVE}, 28')
    a(f's_add_u32 s{S_A}, s{S_A}, s{S_T0}')
    a(f's_lshl_b32 s{S_A}, s{S_A}, 10')
    a(f's_add_u32 s{S_A}, s{S_A}, {W2P}')
    a(f's_mul_i32 s{S_B}, s{S_TB}, 224')
    a(f's_add_u32 s{S_B}, s{S_B}, s{S_T0}')
    a(f's_lshl_b32 s{S_B}, s{S_B}, 10')
    a(f's_add_u32 s{S_B}, s{S_B}, {HMP}')
    def issue(i):
        q = i % DEP
        for n in range(2):
            a(f's_add_u32 s{S_T0}, s{S_B}, {(n*112 + i)*1024}')
            a(f'buffer_load_dwordx4 v[{Bq[q][n]}:{Bq[q][n]+3}], v{l16}, s[{R_WS}:{R_WS+3}], s{S_T0} offen{SCL}')
            a(f's_add_u32 s{S_T0}, s{S_A}, {(n*112 + i)*1024}')
            a(f'buffer_load_dwordx4 v[{Aq[q][n]}:{Aq[q][n]+3}], v{l16}, s[{R_WS}:{R_WS+3}], s{S_T0} offen{SCL}')
    for i in range(DEP):
        issue(i)
    a(f's_lshl_b32 s{S_T0}, s{S_WAVE}, 3')
    a(f'v_lshrrev_b32 v{t}, 3, v0')
    a(f'v_add_u32 v{t}, s{S_T0}, v{t}')
    a(f'v_and_b32 v{u}, 7, v0')
    a(f'v_mul_u32_u24 v{vr_}, {P4_PITCH}, v{u}')
    a(f'v_lshl_add_u32 v{vr_}, v{t}, 4, v{vr_}')
    a(f'v_mul_u32_u24 v{vo}, 896, v{t}')
    a(f'v_lshl_add_u32 v{vo}, v{u}, 4, v{vo}')
    a(f'v_lshrrev_b32 v{vh}, 1, v{u}')
    a(f'v_lshlrev_b32 v{vh}, 10, v{vh}')
    a(f'v_and_b32 v{u}, 1, v{u}')
    a(f'v_lshl_add_u32 v{vh}, v{u}, 9, v{vh}')
    a(f'v_lshl_add_u32 v{vh}, v{t}, 4, v{vh}')
    for i in range(28):
        q = i % DEP
        for tau in range(2):
            for n in range(2):
                r = acc[tau, n]
                c = '0' if i == 0 else f'v[{r}:{r+15}]'
                a(f'v_mfma_f32_32x32x16_bf16 v[{r}:{r+15}], v[{Aq[q][n]}:{Aq[q][n]+3}], v[{Bq[q][tau]}:{Bq[q][tau]+3}], {c}')
        if i + DEP < 28:
            issue(i + DEP)
        if i == 20:
            a(f's_mul_i32 s{S_T1}, s{S_TB}, {56*1024}')
            a(f's_lshl_b32 s{S_T2}, s{S_H}, 12')
            a(f's_add_u32 s{S_T1}, s{S_T1}, s{S_T2}')
            a(f's_add_u32 s{S_T1}, s{S_T1}, {HP}')
            for it in range(2):
                if it:
                    a(f's_add_u32 s{S_T1}, s{S_T1}, {28*1024}')
                a(f'buffer_load_dwordx4 v[{H[it]}:{H[it]+3}], v{vh}, s[{R_WS}:{R_WS+3}], s{S_T1} offen{SCL}')
    a(f's_mul_i32 s{S_T0}, s{S_WAVE}, {16*P4_PITCH}')
    a(f'v_add_u32 v{t}, s{S_T0}, v{l16}')
    for tau in range(2):
        for n in range(2):
            for q in range(4):
                r = acc[tau, n] + 4*q
                a(f'ds_write_b128 v{t}, v[{r}:{r+3}] offset:{((2*tau+n)*4+q)*P4_PITCH}')
    a('s_waitcnt lgkmcnt(0)')
    a('s_barrier')
    P = [[[Aq[(it*4+wv) % DEP][hf] for hf in range(2)] for wv in range(4)] for it in range(2)]
    for it in range(2):
        for wv in range(4):
            for hf in range(2):
                r = P[it][wv][hf]
                off = (wv*16 + it*8)*P4_PITCH + hf*512
                if off > 65535 - 8000:
                    pass
                a(f'ds_read_b128 v[{r}:{r+3}], v{vr_} offset:{off}')
    a(f's_mul_i32 s{S_T1}, s{S_TB}, {64*896}')
    a(f's_lshl_b32 s{S_T2}, s{S_H}, 7')
    a(f's_add_u32 s{S_T1}, s{S_T1}, s{S_T2}')
    for it in range(2):
        for hf in range(2):
            r0 = P[it][0][hf]
            for k in range(4):
                a(f'v_add_f32 v{r0+k}, v{r0+k}, v{P[it][1][hf]+k}')
                a(f'v_add_f32 v{P[it][2][hf]+k}, v{P[it][2][hf]+k}, v{P[it][3][hf]+k}')
            for k in range(4):
                a(f'v_add_f32 v{r0+k}, v{r0+k}, v{P[it][2][hf]+k}')
            xr = P[it][1][hf]
            a(f'v_lshlrev_b32 v{xr}, 16, v{H[it]+2*hf}')
            a(f'v_and_b32 v{xr+1}, 0xffff0000, v{H[it]+2*hf}')
            a(f'v_lshlrev_b32 v{xr+2}, 16, v{H[it]+2*hf+1}')
            a(f'v_and_b32 v{xr+3}, 0xffff0000, v{H[it]+2*hf+1}')
            for k in range(4):
                a(f'v_add_f32 v{r0+k}, v{r0+k}, v{xr+k}')
            a(f'v_cvt_pk_bf16_f32 v{H[it]+2*hf}, v{r0}, v{r0+1}')
            a(f'v_cvt_pk_bf16_f32 v{H[it]+2*hf+1}, v{r0+2}, v{r0+3}')
        if it:
            a(f's_add_u32 s{S_T1}, s{S_T1}, {32*896}')
        a(f'buffer_store_dwordx4 v[{H[it]}:{H[it]+3}], v{vo}, s[{R_OUT}:{R_OUT+3}], s{S_T1} offen')

HEADER = open('cdna_kernels/' + NAME + '.s.ref').read().split('; Override launch')[0]

def kd(name, vgpr):
    acc = (vgpr + 3) // 4 * 4
    return f""".amdhsa_kernel {name}
  .amdhsa_next_free_vgpr {vgpr}
  .amdhsa_next_free_sgpr 96
  .amdhsa_accum_offset {acc}
  .amdhsa_group_segment_fixed_size 0
  .amdhsa_kernarg_size 80
  .amdhsa_user_sgpr_count 2
  .amdhsa_user_sgpr_kernarg_segment_ptr 1
  .amdhsa_system_sgpr_workgroup_id_x 1
.end_amdhsa_kernel
"""

def build_multi(which=(1, 2, 3, 4)):
    ks = {1: (k1, 'k1_kernel', 256, K1_LDS), 2: (k2, 'k2_kernel', 256, 56*1024),
          3: (k3, 'k3_kernel', 256, K3_LDS), 4: (k4, 'k4_kernel', 224, K4_LDS)}
    head = HEADER
    body = ''; kds = ''
    for i in which:
        fn, name, nwg, lds = ks[i]
        a = Asm()
        a.uid = i * 10000
        a.exit_labels = set()
        hi = fn(a)
        nw = a.auto_waits()
        nh = a.fix_hazards()
        pr = a.check_backedges()
        assert not pr, pr
        sys.stderr.write(f'{name}: vgpr {hi} auto waits {nw} nops {nh} instrs {sum(1 for x in a.items if not isinstance(x, tuple))}\n')
        head += f'; @launch kernel={name} grid=({nwg},1,1) block=(256,1,1) lds={lds}\n'
        body += f'.globl {name}\n.p2align 8\n.type {name},@function\n{name}:\n' + a.text()
        kds += kd(name, hi)
    return head + '.amdgcn_target "amdgcn-amd-amdhsa--gfx950"\n.text\n' + body + '.section .rodata,"a"\n.p2align 6\n' + \
        kds.replace('.end_amdhsa_kernel\n.amdhsa_kernel', '.end_amdhsa_kernel\n.p2align 6\n.amdhsa_kernel')

if __name__ == '__main__':
    out = sys.argv[1] if len(sys.argv) > 1 else 'cdna_kernels/' + NAME + '.s'
    open(out, 'w').write(build_multi())
```
